```python
import torch

def _softmax(x, axis=-1):
    return torch.softmax(x, dim=axis)
def _gelu(x):
    return torch.nn.functional.gelu(x, approximate="tanh")
def _silu(x):
    return torch.nn.functional.silu(x)
def _sigmoid(x):
    return torch.sigmoid(x)
def _layernorm(x, axis=-1, eps=1e-5):
    m = x.mean(dim=axis, keepdim=True)
    v = x.var(dim=axis, keepdim=True, unbiased=False)
    return (x - m) / torch.sqrt(v + eps)
def _scatter_add(tgt, idx, src, axis=0):
    return tgt.clone().index_add_(axis, idx, src)
def _segment_sum(src, seg, n):
    out = torch.zeros((n,) + src.shape[1:], dtype=src.dtype)
    return out.index_add_(0, seg, src)
def _pad(x, pw):
    flat = tuple(v for pair in reversed(pw) for v in pair)
    return torch.nn.functional.pad(x, flat)

kernel_name = 'interleave_layers__sliding_block__glu_gated_bilinear__prompt'

def setup_inputs():

    _w = (lambda a: (lambda t: t.to(torch.bfloat16) if t.is_floating_point() else t)(torch.as_tensor(a)))
    def _A_setup():
        B, S, D = 1, 2048, 640
        return {
            "x": _w((lambda *s: torch.randn(*s, dtype=torch.bfloat16) * 0.05)(B, S, D)),
            "wqkv": _w((lambda *s: torch.randn(*s, dtype=torch.bfloat16) * 0.05)(D, 3 * D)),
            "wo": _w((lambda *s: torch.randn(*s, dtype=torch.bfloat16) * 0.05)(D, D)),
        }
    _A_in = _A_setup()

    def _B_setup():
        B, S, D, F = 1, 2048, 640, 1728
        return {
            "x": _w((lambda *s: torch.randn(*s, dtype=torch.bfloat16) * 0.05)(B, S, D)),
            "w_gate": _w((lambda *s: torch.randn(*s, dtype=torch.bfloat16) * 0.8)(D, F) * (D ** -0.5)),
            "w_up": _w((lambda *s: torch.randn(*s, dtype=torch.bfloat16) * 0.8)(D, F) * (D ** -0.5)),
            "w_down": _w((lambda *s: torch.randn(*s, dtype=torch.bfloat16) * 0.8)(F, D) * (F ** -0.5)),
        }
    _B_in = _B_setup()

    return {
        "A_x": _A_in["x"],
        "A_wqkv": _A_in["wqkv"],
        "A_wo": _A_in["wo"],
        "B_x": _B_in["x"],
        "B_w_gate": _B_in["w_gate"],
        "B_w_up": _B_in["w_up"],
        "B_w_down": _B_in["w_down"],
    }

def reference(A_x, A_wqkv, A_wo, B_x, B_w_gate, B_w_up, B_w_down):
    def _A_ref(x, wqkv, wo):
        B, S, D = x.shape
        H = 32; Dh = D // H; W = 256
        qkv = (lambda x, *d: x.permute(*d))((x @ wqkv).reshape(B, S, 3, H, Dh), 2, 0, 3, 1, 4)
        q, k, v = qkv[0], qkv[1], qkv[2]
        scores = torch.einsum("bhqd,bhkd->bhqk", q, k) * (Dh ** -0.5)
        idx = torch.arange(S)
        mask = (idx[:, None] - idx[None, :] >= 0) & (idx[:, None] - idx[None, :] < W)
        scores = torch.where(mask[None, None], scores, -1e9)
        p = _softmax(scores, axis=-1)
        o = torch.einsum("bhqk,bhkd->bhqd", p, v)
        return (lambda x, *d: x.permute(*d))(o, 0, 2, 1, 3).reshape(B, S, D) @ wo

    def _B_ref(x, w_gate, w_up, w_down):
        g = torch.einsum("bsd,df->bsf", x, w_gate)
        u = torch.einsum("bsd,df->bsf", x, w_up)
        h = g * u
        return torch.einsum("bsf,fd->bsd", h, w_down)

    x = A_x
    x = x + _A_ref(_layernorm(x, axis=-1), A_wqkv, A_wo)
    x = x + _B_ref(_layernorm(x, axis=-1), B_w_gate, B_w_up, B_w_down)
    x = x + _A_ref(_layernorm(x, axis=-1), A_wqkv, A_wo)
    x = x + _B_ref(_layernorm(x, axis=-1), B_w_gate, B_w_up, B_w_down)
    return x
```

```python
import re
def v(i, n=1):
    return f"v{i}" if n == 1 else f"v[{i}:{i+n-1}]"
def a(i, n=1):
    return f"a{i}" if n == 1 else f"a[{i}:{i+n-1}]"
def s(i, n=1):
    return f"s{i}" if n == 1 else f"s[{i}:{i+n-1}]"

_REG = re.compile(r"^(-|\|)?(abs\()?([vas])(\d+|\[(\d+):(\d+)\])\)?\|?$")
def regset(tok):
    t = tok.strip()
    if t in ("vcc",): return {("s", 106), ("s", 107)}
    if t == "vcc_lo": return {("s", 106)}
    if t == "vcc_hi": return {("s", 107)}
    if t == "exec": return {("s", 126), ("s", 127)}
    if t == "exec_lo": return {("s", 126)}
    if t == "exec_hi": return {("s", 127)}
    if t == "m0": return {("s", 124)}
    m = _REG.match(t)
    if not m: return set()
    f = m.group(3)
    if m.group(5) is not None:
        lo, hi = int(m.group(5)), int(m.group(6))
    else:
        lo = hi = int(m.group(4))
    return {(f, i) for i in range(lo, hi + 1)}

TRANS = ("v_exp_f32", "v_log_f32", "v_rcp_f32", "v_rsq_f32", "v_sqrt_f32", "v_sin_f32", "v_cos_f32", "v_rcp_iflag_f32")
class Ins:
    __slots__ = ("text", "mn", "ops", "dst", "src", "kind", "passes", "states", "srcC")
    def __init__(self, text):
        self.text = text
        body = text.split(";")[0].strip()
        parts = body.split(None, 1)
        self.mn = parts[0] if parts else ""
        rest = parts[1] if len(parts) > 1 else ""
        ops = [o.strip() for o in rest.split(",")] if rest else []
        clean = []
        for o in ops:
            clean.append(o.split()[0] if o.split() else o)
        self.ops = clean
        mn = self.mn
        self.dst = set(); self.src = set(); self.passes = 0; self.states = 1
        R = [regset(o) for o in clean]
        def U(l):
            r = set()
            for x in l: r |= x
            return r
        if mn.startswith("v_mfma"):
            self.kind = "mfma"; self.dst = R[0]; self.src = U(R[1:])
            self.passes = 8 if "32x32" in mn else 4
            self.srcC = R[3] if len(R) > 3 else set()
        elif mn.startswith("v_permlane") and "swap" in mn:
            self.kind = "valu"; self.dst = U(R[:2]); self.src = U(R[:2])
        elif mn.startswith("v_cmp"):
            self.kind = "valu"; self.dst = R[0]; self.src = U(R[1:])
            if mn.startswith("v_cmpx"): self.dst |= regset("exec")
        elif mn.startswith("v_readfirstlane") or mn.startswith("v_readlane"):
            self.kind = "valu"; self.dst = R[0]; self.src = U(R[1:])
        elif mn in ("v_add_co_u32", "v_sub_co_u32", "v_addc_co_u32", "v_subb_co_u32", "v_subrev_co_u32") or mn.startswith("v_div_scale") or mn.startswith("v_mad_u64"):
            self.kind = "valu"; self.dst = R[0] | R[1]; self.src = U(R[2:])
        elif mn.startswith("v_"):
            self.kind = "valu"; self.dst = R[0]; self.src = U(R[1:])
            if mn.startswith("v_fmac") or mn.startswith("v_dot2c") or mn.startswith("v_writelane") or "_dpp" in mn or "row_" in body or "quad_perm" in body: self.src |= R[0]
        elif mn.startswith("ds_"):
            self.kind = "ds"
            if mn.startswith("ds_read") or mn.startswith("ds_bpermute") or mn.startswith("ds_permute") or mn.startswith("ds_swizzle"):
                self.dst = R[0]; self.src = U(R[1:])
            else:
                self.src = U(R)
        elif mn.startswith("buffer_") or mn.startswith("global_"):
            self.kind = "vmem"
            lds = " lds" in body
            if ("load" in mn and not lds) :
                self.dst = R[0]; self.src = U(R[1:])
            elif "atomic" in mn and " sc0" in body:
                self.dst = R[0]; self.src = U(R)
            else:
                self.src = U(R)
            if lds: self.src |= regset("m0")
        elif mn == "s_nop":
            self.kind = "nop"; self.states = int(clean[0], 0) + 1
        elif mn.startswith("s_"):
            self.kind = "salu"
            nodst = ("s_cmp", "s_cbranch", "s_branch", "s_waitcnt", "s_barrier", "s_endpgm", "s_sleep", "s_setprio", "s_bitcmp", "s_setreg")
            if not mn.startswith(nodst) and R:
                self.dst = R[0]; self.src = U(R[1:])
                if "saveexec" in mn: self.dst |= regset("exec"); self.src |= regset("exec")
            else:
                self.src = U(R)
        else:
            self.kind = "other"
    def is_dpp(self):
        return "_dpp" in self.mn or "row_" in self.text or "quad_perm" in self.text

def need(prod, cons):
    n = 0
    pv = {r for r in prod.dst if r[0] in "va"}
    ps = {r for r in prod.dst if r[0] == "s"}
    if prod.kind == "valu":
        if cons.kind == "mfma" and pv & cons.src: n = max(n, 2)
        if cons.kind == "valu":
            if ps & cons.src:
                n = max(n, 4 if (cons.mn.startswith("v_readlane") or cons.mn.startswith("v_writelane")) else 2)
            if (("s", 106) in ps) and (cons.mn.startswith("v_cndmask") or cons.mn.startswith("v_addc") or cons.mn.startswith("v_subb") or cons.mn.startswith("v_div_fmas")):
                n = max(n, 4 if cons.mn.startswith("v_div_fmas") else 2)
            if pv & cons.src:
                if cons.mn.startswith("v_readfirstlane") or cons.mn.startswith("v_readlane"): n = max(n, 1)
                if cons.mn.startswith("v_permlane") : n = max(n, 2)
                if cons.is_dpp(): n = max(n, 2)
                if prod.mn.replace("_e32", "").replace("_e64", "") in TRANS: n = max(n, 1)
            if ("s", 126) in ps:
                if cons.is_dpp(): n = max(n, 5)
                if cons.mn.startswith("v_permlane") or cons.mn.startswith("v_readlane") or cons.mn.startswith("v_readfirstlane"): n = max(n, 4)
        if cons.kind == "vmem" and ps & cons.src: n = max(n, 5)
        if cons.kind == "salu" and ps & cons.src: n = max(n, 4)
        if cons.kind == "mfma" and ("s", 126) in ps: n = max(n, 4)
    if prod.kind == "mfma":
        big = prod.passes == 8
        if cons.kind == "mfma":
            cA = set()
            for o in cons.ops[1:3]: cA |= regset(o)
            if pv & cA: n = max(n, 12 if big else 8)
            cC = cons.srcC
            if pv & cC and not (cC == prod.dst and cons.passes == prod.passes): n = max(n, 10 if big else 6)
            if pv & cons.dst and not (cons.dst == prod.dst and cC == prod.dst) : n = max(n, 10 if big else 6)
        elif cons.kind in ("valu", "vmem", "ds"):
            if pv & (cons.src | cons.dst): n = max(n, 12 if big else 8)
        if cons.kind == "valu" and prod.srcC & cons.dst: n = max(n, 7 if big else 3)
    if prod.kind == "salu" and ("s", 124) in ps and cons.kind in ("vmem",) and ("s", 124) in cons.src: n = max(n, 1)
    if prod.kind == "vmem" and ("store" in prod.mn) and ("x4" in prod.mn or "x3" in prod.mn):
        data = regset(prod.ops[0])
        if cons.kind == "valu" and data & cons.dst: n = max(n, 2)
        elif cons.kind in ("vmem", "ds", "mfma") and data & cons.dst: n = max(n, 1)
    return n

class Asm:
    def __init__(self, autonop=True):
        self.items = []
        self._lab = 0
        self.autonop = autonop
        self.prefix = ""
    def __call__(self, txt):
        for l in txt.split("\n"):
            t = l.strip()
            if not t: continue
            if t.endswith(":") and " " not in t: self.items.append(("l", t))
            elif t.startswith(";") or t.startswith("."): self.items.append(("c", t))
            else: self.items.append(("i", Ins(t)))
    def c(self, txt):
        self.items.append(("c", "; " + txt))
    def label(self, name):
        self.items.append(("l", name + ":"))
    def newlabel(self, base="L"):
        self._lab += 1
        return f"{self.prefix}{base}_{self._lab}"
    def text(self):
        out = []
        hist = []
        nnop = 0
        for k, it in self.items:
            if k == "l":
                out.append(it); continue
            if k == "c":
                out.append("    " + it); continue
            if self.autonop:
                req = 0
                dist = 0
                for p in reversed(hist):
                    nd = need(p, it)
                    if nd - dist > req: req = nd - dist
                    dist += p.states
                    if dist >= 20: break
                if req > 0:
                    while req > 0:
                        m = min(req, 16)
                        nop = Ins(f"s_nop {m-1}")
                        hist.append(nop); out.append("    " + nop.text); req -= m; nnop += 1
            hist.append(it)
            if len(hist) > 40: hist = hist[-40:]
            if it.mn in ("s_branch", "s_endpgm", "s_setpc_b64"): hist = []
            out.append("    " + it.text)
        self.nnop = nnop
        return "\n".join(out) + "\n"

def kernel_header(name):
    return f""".text
.globl {name}
.p2align 8
.type {name},@function
{name}:
"""
def kernel_desc(name, vgpr=256, sgpr=102, accum=None, wgy=False):
    if accum is None: accum = min(256, (vgpr + 3) // 4 * 4)
    return f""".section .rodata,"a"
.p2align 6
.amdhsa_kernel {name}
  .amdhsa_next_free_vgpr {vgpr}
  .amdhsa_next_free_sgpr {sgpr}
  .amdhsa_accum_offset {accum}
  .amdhsa_group_segment_fixed_size 0
  .amdhsa_kernarg_size 80
  .amdhsa_user_sgpr_count 2
  .amdhsa_user_sgpr_kernarg_segment_ptr 1
  .amdhsa_system_sgpr_workgroup_id_x 1
{"  .amdhsa_system_sgpr_workgroup_id_y 1" if wgy else ""}
.end_amdhsa_kernel
"""
TARGET = '.amdgcn_target "amdgcn-amd-amdhsa--gfx950"\n'
```

```python
import sys
from asmgen import *

S_, D_, F_, H_, DH = 2048, 640, 1728, 32, 20
SEC = S_ * D_ * 2
WS_QKV = 0
WS_O   = 3 * SEC
WS_X1  = 4 * SEC
WS_X2  = 5 * SEC
WS_H   = 6 * SEC
WS_ST0 = WS_H + S_ * F_ * 2
ST_SZ  = S_ * 64
WS_ST1 = WS_ST0 + ST_SZ
WS_ST2 = WS_ST1 + ST_SZ
WS_CS  = WS_ST2 + ST_SZ
CS_SZ  = 5376 * 4
WS_END = WS_CS + CS_SZ
P_X, P_WQKV, P_WO, P_BX, P_WG, P_WU, P_WD, P_OUT, P_WS = 4, 6, 8, 10, 12, 14, 16, 18, 20
S_LAYER = 3
S_WAVE = 22
S_XCD, S_IDX = 23, 96
SRD_FMT = "0x20000"
QSCALE = (DH ** -0.5) * 1.4426950408889634

def f32bits(x):
    import struct
    return "0x%08x" % struct.unpack("<I", struct.pack("<f", x))[0]

def common_prologue(A, nwg, endlabel):
    A(f"s_cmp_ge_u32 s2, {nwg}")
    A(f"s_cbranch_scc1 {endlabel}")
    A("s_load_dwordx16 s[4:19], s[0:1], 0")
    A("s_load_dwordx2 s[20:21], s[0:1], 72")
    A("v_lshrrev_b32 v1, 6, v0")
    A("v_and_b32 v0, 63, v0")
    A(f"v_readfirstlane_b32 s{S_WAVE}, v1")
    A(f"s_and_b32 s{S_XCD}, s2, 7")
    A(f"s_lshr_b32 s{S_IDX}, s2, 3")
    A("s_waitcnt lgkmcnt(0)")

def srd(A, r, plo, size, off=0):
    if off:
        A(f"s_add_u32 s{r}, s{plo}, {off}")
        A(f"s_addc_u32 s{r+1}, s{plo+1}, 0")
    else:
        A(f"s_mov_b32 s{r}, s{plo}")
        A(f"s_mov_b32 s{r+1}, s{plo+1}")
    A(f"s_mov_b32 s{r+2}, {size}")
    A(f"s_mov_b32 s{r+3}, {SRD_FMT}")

def srd_sel(A, r, p0, off0, p1, off1, size):
    A(f"s_add_u32 s{r}, s{p0}, {off0}\ns_addc_u32 s{r+1}, s{p0+1}, 0")
    A(f"s_add_u32 s{r+2}, s{p1}, {off1}\ns_addc_u32 s{r+3}, s{p1+1}, 0")
    A(f"s_cmp_eq_u32 s{S_LAYER}, 0")
    A(f"s_cselect_b32 s{r}, s{r}, s{r+2}")
    A(f"s_cselect_b32 s{r+1}, s{r+1}, s{r+3}")
    A(f"s_mov_b32 s{r+2}, {size}")
    A(f"s_mov_b32 s{r+3}, {SRD_FMT}")

def swap23(A, dst, src, t0):
    A(f"v_and_b32 {v(dst)}, 0x33, {v(src)}")
    A(f"v_and_b32 {v(t0)}, 4, {v(src)}")
    A(f"v_lshl_or_b32 {v(dst)}, {v(t0)}, 1, {v(dst)}")
    A(f"v_and_b32 {v(t0)}, 8, {v(src)}")
    A(f"v_lshrrev_b32 {v(t0)}, 1, {v(t0)}")
    A(f"v_or_b32 {v(dst)}, {v(dst)}, {v(t0)}")

class Gemm:
    def __init__(self, name, BM, xstride, K, warrs, R, WM, WN, TM, TN, ring, sched, b):
        self.name = name; self.BM = BM; self.xstride = xstride; self.K = K; self.S = K // 64
        self.warrs = warrs
        self.R = R; self.WM = WM; self.WN = WN; self.TM = TM; self.TN = TN
        self.ring = ring; self.sched = sched; self.b = b
        self.xbytes = BM * 128
        off = self.xbytes
        for w in warrs:
            w["off"] = off; w["rowB"] = w["cols"] * 2; off += 64 * w["rowB"]
        self.slot = off
        self.lds = self.slot * R

SR_X, SR_W0, SR_W1, SR_OUT, SR_AUX, SR_AUX2, SR_AUX3 = 24, 28, 32, 36, 40, 44, 48
S_M0, S_N0 = 52, 53
S_XO, S_WO = 54, 55
S_SLOT, S_CUR, S_IT, S_DELTA, S_DP, S_DM = 56, 57, 58, 59, 60, 61
S_T0, S_T1, S_T2, S_T3 = 62, 63, 64, 65

def emit_loader(A, g, lw, srd_of_arr):
    ents = []
    for i in range(g.BM // 8): ents.append(("x", i))
    for ai, w in enumerate(g.warrs):
        for i in range(w["cols"] // 8): ents.append((ai, i))
    n = len(ents)
    base, rem = divmod(n, 4)
    start = lw * base + min(lw, rem); cnt = base + (1 if lw < rem else 0)
    mine = ents[start:start + cnt]
    VO = 8
    A.c(f"{g.name}: loader wave {lw}: {mine}")
    for e, (kind, i) in enumerate(mine):
        d = VO + e
        if kind == "x":
            A(f"v_lshrrev_b32 v2, 3, v0")
            A(f"v_and_b32 v3, 7, v0")
            A(f"v_xor_b32 v3, v3, v2")
            A(f"v_add_u32 v2, {8*i}, v2")
            A(f"v_add_u32 v2, s{S_M0}, v2")
            A(f"s_mov_b32 s{S_T0}, {g.xstride}")
            A(f"v_mul_lo_u32 v2, v2, s{S_T0}")
            A(f"v_lshl_add_u32 {v(d)}, v3, 4, v2")
        else:
            w = g.warrs[kind]
            cpr = w["cols"] // 8
            A(f"v_add_u32 v2, {64*i}, v0")
            if cpr == 16:
                A("v_lshrrev_b32 v3, 4, v2")
                A("v_and_b32 v4, 15, v2")
            else:
                magic = {10: 6554, 14: 4682}[cpr]
                A(f"v_mul_u32_u24 v3, {magic}, v2")
                A("v_lshrrev_b32 v3, 16, v3")
                A(f"v_mul_u32_u24 v4, {cpr}, v3")
                A("v_sub_u32 v4, v2, v4")
            if w["xor"]:
                A("v_lshrrev_b32 v5, 1, v4")
                A("v_and_b32 v6, 7, v3")
                A("v_xor_b32 v5, v5, v6")
                A("v_and_b32 v4, 1, v4")
                A("v_lshl_or_b32 v4, v5, 1, v4")
            swap23(A, 5, 3, 6)
            A(f"s_mov_b32 s{S_T0}, {w['stride']}")
            A(f"v_mul_lo_u32 v5, v5, s{S_T0}")
            A(f"v_lshl_add_u32 v5, v4, 4, v5")
            A(f"s_lshl_b32 s{S_T1}, s{S_N0}, 1")
            A(f"v_add_u32 {v(d)}, s{S_T1}, v5")
    def issue():
        for e, (kind, i) in enumerate(mine):
            if kind == "x":
                ldsoff = i * 1024; r = SR_X; so = S_XO
            else:
                ldsoff = g.warrs[kind]["off"] + i * 1024; r = srd_of_arr[kind]; so = S_WO
            A(f"s_add_u32 m0, s{S_SLOT}, {ldsoff}")
            A(f"buffer_load_dwordx4 {v(VO+e)}, s[{r}:{r+3}], s{so} offen lds")
        A(f"s_add_u32 s{S_XO}, s{S_XO}, 128")
        A(f"s_add_u32 s{S_WO}, s{S_WO}, {64 * g.warrs[0]['stride']}")
        A(f"s_add_u32 s{S_SLOT}, s{S_SLOT}, {g.slot}")
        A(f"s_cmp_eq_u32 s{S_SLOT}, {g.slot * g.R}")
        A(f"s_cselect_b32 s{S_SLOT}, 0, s{S_SLOT}")
    A(f"s_mov_b32 s{S_XO}, 0\ns_mov_b32 s{S_WO}, 0\ns_mov_b32 s{S_SLOT}, 0")
    S, R = g.S, g.R
    for st in range(R): issue()
    A(f"s_waitcnt vmcnt({cnt*(R-1)})")
    A("s_barrier")
    nloop = S - R
    if nloop > 0:
        lab = A.newlabel(f"ld{lw}")
        A(f"s_mov_b32 s{S_IT}, {nloop}")
        A.label(lab)
        A(f"s_waitcnt vmcnt({cnt*(R-2)})")
        A("s_barrier")
        issue()
        A(f"s_sub_u32 s{S_IT}, s{S_IT}, 1")
        A(f"s_cmp_lg_u32 s{S_IT}, 0")
        A(f"s_cbranch_scc1 {lab}")
    for st in range(max(nloop, 0), S):
        if st + 1 < S:
            outstanding = (S - 1) - (st + 1)
            A(f"s_waitcnt vmcnt({cnt*outstanding})")
        A("s_barrier")

def emit_compute_main(A, g, ACC, WR, XB, VXA, VWA, wtile):
    TN, TM, P = g.TN, g.TM, 2 * g.TN
    def wread(u):
        ks, f = divmod(u, TN)
        ai, ft, ar = wtile(f)
        w = g.warrs[ai]
        base = w["off"] + ks * 32 * w["rowB"] + (0 if w["xor"] else ft * 32)
        r = WR + 4 * (u % g.ring)
        return [f"ds_read_b64_tr_b16 {v(r,2)}, {v(VWA+ar)} offset:{base}",
                f"ds_read_b64_tr_b16 {v(r+2,2)}, {v(VWA+ar)} offset:{base + 8*w['rowB']}"]
    def xread(ks, t):
        r = XB + 4 * (ks * TM + t)
        return [f"ds_read_b128 {v(r,4)}, {v(VXA+ks)} offset:{t*2048}"]
    def reads_at(p):
        out = []
        for it in g.sched.get(p, []):
            if it[0] == "W": out.append((("W", it[1]), wread(it[1])))
            else: out.append((("X", it[1], it[2]), xread(it[1], it[2])))
        return out
    def simulate(queue, emit):
        for p in range(P):
            ks, f = divmod(p, TN)
            if p == g.b:
                if emit:
                    A("s_waitcnt lgkmcnt(0)")
                    A("s_barrier")
                    A(f"s_add_u32 s{S_CUR}, s{S_CUR}, 1")
                    A(f"s_cmp_eq_u32 s{S_CUR}, {g.R}")
                    A(f"s_cselect_b32 s{S_DELTA}, s{S_DM}, s{S_DP}")
                    A(f"s_cselect_b32 s{S_CUR}, 0, s{S_CUR}")
                    for r in range(2): A(f"v_add_u32 {v(VXA+r)}, s{S_DELTA}, {v(VXA+r)}")
                    for r in range(g.nwa): A(f"v_add_u32 {v(VWA+r)}, s{S_DELTA}, {v(VWA+r)}")
                queue.clear()
            needs = [("W", p)]
            if f == 0: needs += [("X", ks, t) for t in range(TM)]
            last = -1
            for i, tag in enumerate(queue):
                if tag in needs: last = i
            if last >= 0:
                n = len(queue) - 1 - last
                if emit: A(f"s_waitcnt lgkmcnt({n})")
                del queue[:last + 1]
            rd = []
            for tag, ins in reads_at(p):
                for x in ins: rd.append((tag, x))
            ri = 0
            per = -(-len(rd) // TM) if rd else 0
            for t in range(TM):
                acc = ACC + 4 * (f * TM + t)
                if emit:
                    A(f"v_mfma_f32_16x16x32_bf16 {v(acc,4)}, {v(WR + 4*(p % g.ring),4)}, {v(XB + 4*(ks*TM+t),4)}, {v(acc,4)}")
                for _ in range(per):
                    if ri < len(rd):
                        if emit: A(rd[ri][1])
                        queue.append(rd[ri][0]); ri += 1
            assert len(queue) <= 15, (g.name, p, len(queue))
        return queue
    A("s_barrier")
    q = []
    for p in range(g.b, P):
        for tag, ins in reads_at(p):
            for x in ins:
                A(x); q.append(tag)
    q0 = list(q)
    lab = A.newlabel("mm")
    A(f"s_mov_b32 s{S_IT}, {g.S}")
    A.label(lab)
    qend = simulate(list(q0), True)
    assert qend == q0, (qend, q0)
    A(f"s_sub_u32 s{S_IT}, s{S_IT}, 1")
    A(f"s_cmp_lg_u32 s{S_IT}, 0")
    A(f"s_cbranch_scc1 {lab}")
    A("s_waitcnt lgkmcnt(0)")

def emit_xaddr(A, g, VXA, wm_tiles_sgpr):
    A("v_and_b32 v2, 15, v0")
    A("v_lshrrev_b32 v3, 4, v0")
    A("v_and_b32 v4, 7, v2")
    A("v_xor_b32 v4, v4, v3")
    A("v_lshlrev_b32 v4, 4, v4")
    A(f"v_lshl_add_u32 v4, v2, 7, v4")
    A(f"s_lshl_b32 s{S_T0}, s{wm_tiles_sgpr}, 11")
    A(f"v_add_u32 {v(VXA)}, s{S_T0}, v4")
    A(f"v_xor_b32 {v(VXA+1)}, 64, {v(VXA)}")

def emit_waddr_base(A, w, dst):
    A("v_lshrrev_b32 v3, 4, v0")
    A("v_and_b32 v2, 15, v0")
    A("v_lshrrev_b32 v4, 2, v2")
    A("v_and_b32 v5, 1, v3")
    A("v_lshl_add_u32 v5, v5, 2, v4")
    A("v_lshrrev_b32 v6, 1, v3")
    A("v_lshl_add_u32 v6, v6, 4, v5")
    A(f"v_mul_u32_u24 v6, {w['rowB']}, v6")
    A("v_and_b32 v2, 3, v2")
    A(f"v_lshl_add_u32 {v(dst)}, v2, 3, v6")

def emit_stats(A, ntok, srd_r, tokbase_sgpr, dst_pairs, scale=None, T=200):
    A(f"v_and_b32 v2, {ntok-1}, v0")
    A(f"v_add_u32 v2, s{tokbase_sgpr}, v2")
    A("v_lshlrev_b32 v2, 6, v2")
    for q in range(4):
        A(f"buffer_load_dwordx4 {v(T+4*q,4)}, v2, s[{srd_r}:{srd_r+3}], 0 offen offset:{16*q}")
    def finish(vmwait):
        A(f"s_waitcnt vmcnt({vmwait})")
        sm = [T + 2*c for c in range(8)]; m2 = [T + 2*c + 1 for c in range(8)]
        t0, t1, t2 = T + 16, T + 17, T + 18
        A(f"v_add_f32 {v(t0)}, {v(sm[0])}, {v(sm[1])}")
        for c in range(2, 8): A(f"v_add_f32 {v(t0)}, {v(t0)}, {v(sm[c])}")
        A(f"v_mul_f32 {v(t0)}, {f32bits(1.0/640)}, {v(t0)}")
        A(f"v_add_f32 {v(t1)}, {v(m2[0])}, {v(m2[1])}")
        for c in range(2, 8): A(f"v_add_f32 {v(t1)}, {v(t1)}, {v(m2[c])}")
        for c in range(8):
            A(f"v_mov_b32 {v(t2)}, {f32bits(1.0/80)}")
            A(f"v_fma_f32 {v(sm[c])}, {v(sm[c])}, {v(t2)}, -{v(t0)}")
            A(f"v_mul_f32 {v(sm[c])}, {v(sm[c])}, {v(sm[c])}")
        A(f"v_add_f32 {v(t2)}, {v(sm[0])}, {v(sm[1])}")
        for c in range(2, 8): A(f"v_add_f32 {v(t2)}, {v(t2)}, {v(sm[c])}")
        A(f"v_mov_b32 {v(T)}, {f32bits(80.0)}")
        A(f"v_fma_f32 {v(t1)}, {v(t2)}, {v(T)}, {v(t1)}")
        A(f"v_mov_b32 {v(T)}, {f32bits(1e-5)}")
        A(f"v_mov_b32 {v(T+1)}, {f32bits(1.0/640)}")
        A(f"v_fma_f32 {v(t1)}, {v(t1)}, {v(T+1)}, {v(T)}")
        A(f"v_rsq_f32 {v(t1)}, {v(t1)}")
        if scale is not None:
            A(f"v_mul_f32 {v(t1)}, s{scale}, {v(t1)}")
        A(f"v_mul_f32 {v(t0)}, {v(t0)}, {v(t1)}")
        A(f"v_sub_f32 {v(t0)}, 0, {v(t0)}")
        A("v_and_b32 v2, 15, v0")
        for t, d in enumerate(dst_pairs):
            A(f"v_lshlrev_b32 v3, 2, v2")
            if t: A(f"v_add_u32 v3, {64*t}, v3")
            A(f"ds_bpermute_b32 {v(d)}, v3, {v(t1)}")
            A(f"ds_bpermute_b32 {v(d+1)}, v3, {v(t0)}")
        A("s_waitcnt lgkmcnt(0)")
    return finish

def role_split(A, g, loaders_setup, name):
    labs = [A.newlabel(f"{name}_ld{i}") for i in range(4)]
    for i in range(4):
        A(f"s_cmp_eq_u32 s{S_WAVE}, {4+i}")
        A(f"s_cbranch_scc1 {labs[i]}")
    return labs

def gen_qkv(A):
    g = Gemm("qkv", BM=128, xstride=1280, K=640, warrs=[dict(stride=3840, cols=128, xor=True)], R=4, WM=2, WN=2, TM=4, TN=4, ring=8, b=4,
             sched={0: [("W", 4), ("X", 1, 0), ("X", 1, 1)], 1: [("W", 5), ("X", 1, 2), ("X", 1, 3)], 2: [("W", 6), ("W", 7)],
                    4: [("W", 0), ("X", 0, 0), ("X", 0, 1)], 5: [("W", 1), ("X", 0, 2), ("X", 0, 3)], 6: [("W", 2), ("W", 3)]})
    g.nwa = 4
    A.prefix = "qkv_"
    end = "qkv_end"
    common_prologue(A, 256, end)
    A(f"s_cmp_ge_u32 s{S_IDX}, 30\ns_cbranch_scc1 {end}")
    A(f"s_and_b32 s{S_T0}, s{S_IDX}, 1\ns_lshl_b32 s{S_T1}, s{S_XCD}, 1\ns_add_u32 s{S_T0}, s{S_T0}, s{S_T1}")
    A(f"s_lshl_b32 s{S_M0}, s{S_T0}, 7")
    A(f"s_lshr_b32 s{S_T2}, s{S_IDX}, 1")
    A(f"s_lshl_b32 s{S_N0}, s{S_T2}, 7")
    srd_sel(A, SR_X, P_X, 0, P_WS, WS_X2, SEC)
    srd(A, SR_W0, P_WQKV, 640 * 3840)
    labs = role_split(A, g, None, "qkv")
    ACC, WR, XB, VXA, VWA, CS, AB, VO = 16, 80, 112, 144, 146, 152, 168, 176
    srd(A, SR_OUT, P_WS, 3 * SEC, WS_QKV)
    srd_sel(A, SR_AUX, P_WS, WS_ST0, P_WS, WS_ST2, ST_SZ)
    srd(A, SR_AUX2, P_WS, CS_SZ, WS_CS)
    A(f"s_lshr_b32 s66, s{S_WAVE}, 1\ns_and_b32 s67, s{S_WAVE}, 1")
    A(f"s_lshl_b32 s68, s66, 6\ns_add_u32 s68, s68, s{S_M0}")
    A(f"s_mul_i32 s69, s{S_T2}, 52\ns_lshr_b32 s69, s69, 8")
    A(f"s_cmp_eq_u32 s69, 0\ns_cselect_b32 s70, {f32bits(QSCALE)}, 1.0")
    fin = emit_stats(A, 64, SR_AUX, 68, [AB + 2*t for t in range(4)], scale=70)
    A("v_lshrrev_b32 v3, 4, v0\nv_lshlrev_b32 v3, 4, v3")
    A(f"s_lshl_b32 s71, s67, 6\ns_add_u32 s71, s71, s{S_N0}\ns_lshl_b32 s72, s71, 2")
    A("v_add_u32 v3, s72, v3")
    for f in range(4):
        A(f"buffer_load_dwordx4 {v(CS+4*f,4)}, v3, s[{SR_AUX2}:{SR_AUX2+3}], 0 offen offset:{64*f}")
    A(f"s_mul_i32 s73, s69, 640\ns_sub_u32 s73, s71, s73\ns_lshr_b32 s73, s73, 2")
    A(f"s_mul_i32 s74, s69, {SEC}")
    A(f"s_mul_i32 s75, s68, 40\ns_add_u32 s74, s74, s75")
    A("v_and_b32 v4, 15, v0\nv_mul_u32_u24 v4, 40, v4\nv_add_u32 v4, s74, v4")
    for f in range(4):
        A("v_lshrrev_b32 v5, 4, v0")
        A(f"v_add_u32 v5, s73, v5")
        if f: A(f"v_add_u32 v5, {4*f}, v5")
        A("v_mul_u32_u24 v6, 205, v5\nv_lshrrev_b32 v6, 10, v6")
        A("v_mul_u32_u24 v7, 5, v6\nv_sub_u32 v7, v5, v7")
        A("s_mov_b32 s75, 81920")
        A("v_mul_lo_u32 v6, v6, s75")
        A("v_lshl_add_u32 v6, v7, 3, v6")
        A(f"v_add_u32 {v(VO+f)}, v6, v4")
    A(f"s_lshl_b32 s76, s66, 2")
    emit_xaddr(A, g, VXA, 76)
    w = g.warrs[0]
    emit_waddr_base(A, w, 8)
    for ff in range(4):
        A(f"s_lshl_b32 s77, s67, 2\ns_add_u32 s77, s77, {ff}")
        A("v_xor_b32 v6, s77, v5")
        A(f"v_lshl_add_u32 {v(VWA+ff)}, v6, 5, v8")
    for i in range(64): A(f"v_mov_b32 {v(ACC+i)}, 0")
    A(f"s_mov_b32 s{S_CUR}, 0\ns_mov_b32 s{S_DP}, {g.slot}\ns_mov_b32 s{S_DM}, {-(g.R-1)*g.slot & 0xffffffff}")
    fin(4)
    emit_compute_main(A, g, ACC, WR, XB, VXA, VWA, lambda f: (0, f, f))
    A("s_waitcnt vmcnt(0)")
    T = 200
    for f in range(4):
        for t in range(4):
            acc = ACC + 4 * (f * 4 + t); ab = AB + 2 * t
            tt = T + 8 * ((f * 4 + t) & 1)
            for h in range(2):
                A(f"v_pk_mul_f32 {v(tt+2*h,2)}, {v(CS+4*f+2*h,2)}, {v(ab,2)} op_sel:[0,1] op_sel_hi:[1,1]")
                A(f"v_pk_fma_f32 {v(tt+2*h,2)}, {v(acc+2*h,2)}, {v(ab,2)}, {v(tt+2*h,2)} op_sel:[0,0,0] op_sel_hi:[1,0,1]")
            A(f"v_cvt_pk_bf16_f32 {v(tt+4)}, {v(tt)}, {v(tt+1)}")
            A(f"v_cvt_pk_bf16_f32 {v(tt+5)}, {v(tt+2)}, {v(tt+3)}")
            A(f"buffer_store_dwordx2 {v(tt+4,2)}, {v(VO+f)}, s[{SR_OUT}:{SR_OUT+3}], 0 offen offset:{640*t}")
    A("s_endpgm")
    for i in range(4):
        A.label(labs[i]); emit_loader(A, g, i, [SR_W0]); A("s_endpgm")
    A.label(end); A("s_endpgm")
    return g.lds

def gen_gu(A):
    sched = {}
    for u in range(6, 28): sched.setdefault(u - 6, []).append(("W", u))
    sched[2].append(("X", 1, 0)); sched[3].append(("X", 1, 1))
    sched[24] = [("W", 0), ("X", 0, 0), ("W", 1), ("X", 0, 1), ("W", 2)]
    sched[25] = [("W", 3)]; sched[26] = [("W", 4)]; sched[27] = [("W", 5)]
    g = Gemm("gu", BM=128, xstride=1280, K=640, warrs=[dict(stride=3456, cols=112, xor=False), dict(stride=3456, cols=112, xor=False)],
             R=3, WM=4, WN=1, TM=2, TN=14, ring=7, b=24, sched=sched)
    g.nwa = 1
    A.prefix = "gu_"
    end = "gu_end"
    common_prologue(A, 256, end)
    A(f"s_and_b32 s{S_T0}, s{S_IDX}, 1\ns_lshl_b32 s{S_T1}, s{S_XCD}, 1\ns_add_u32 s{S_T0}, s{S_T0}, s{S_T1}")
    A(f"s_lshl_b32 s{S_M0}, s{S_T0}, 7")
    A(f"s_lshr_b32 s{S_T2}, s{S_IDX}, 1\ns_mul_i32 s{S_N0}, s{S_T2}, 112\ns_min_u32 s{S_N0}, s{S_N0}, {1728-112}")
    srd(A, SR_X, P_WS, SEC, WS_X1)
    srd(A, SR_W0, P_WG, 640 * 3456)
    srd(A, SR_W1, P_WU, 640 * 3456)
    labs = role_split(A, g, None, "gu")
    ACC, WR, XB, VXA, VWA, CS, AB, VO = 8, 120, 148, 164, 166, 168, 224, 228
    srd(A, SR_OUT, P_WS, S_ * F_ * 2, WS_H)
    srd(A, SR_AUX, P_WS, ST_SZ, WS_ST1)
    srd(A, SR_AUX2, P_WS, CS_SZ, WS_CS)
    A(f"s_lshl_b32 s68, s{S_WAVE}, 5\ns_add_u32 s68, s68, s{S_M0}")
    fin = emit_stats(A, 32, SR_AUX, 68, [AB, AB + 2], T=232)
    A("v_lshrrev_b32 v3, 4, v0\nv_lshlrev_b32 v3, 4, v3")
    A(f"s_add_u32 s72, s{S_N0}, 1920\ns_lshl_b32 s72, s72, 2")
    A("v_add_u32 v3, s72, v3")
    A(f"s_mov_b32 s73, {1728*4}")
    for aa in range(7):
        A(f"buffer_load_dwordx4 {v(CS+4*aa,4)}, v3, s[{SR_AUX2}:{SR_AUX2+3}], 0 offen offset:{64*aa}")
        A(f"buffer_load_dwordx4 {v(CS+28+4*aa,4)}, v3, s[{SR_AUX2}:{SR_AUX2+3}], s73 offen offset:{64*aa}")
    A("v_and_b32 v4, 15, v0\nv_add_u32 v4, s68, v4")
    A("s_mov_b32 s74, 3456\nv_mul_lo_u32 v4, v4, s74")
    A("v_lshrrev_b32 v5, 4, v0\nv_lshlrev_b32 v5, 3, v5")
    A(f"s_lshl_b32 s75, s{S_N0}, 1")
    A(f"v_add3_u32 {v(VO)}, v4, v5, s75")
    A(f"s_lshl_b32 s76, s{S_WAVE}, 1")
    emit_xaddr(A, g, VXA, 76)
    emit_waddr_base(A, g.warrs[0], VWA)
    for i in range(112): A(f"v_mov_b32 {v(ACC+i)}, 0")
    A(f"s_mov_b32 s{S_CUR}, 0\ns_mov_b32 s{S_DP}, {g.slot}\ns_mov_b32 s{S_DM}, {-(g.R-1)*g.slot & 0xffffffff}")
    fin(14)
    emit_compute_main(A, g, ACC, WR, XB, VXA, VWA, lambda f: (f // 7, f % 7, 0))
    A("s_waitcnt vmcnt(0)")
    A(f"s_mov_b32 s77, {16*3456}")
    T = 232
    for aa in range(7):
        for t in range(2):
            ag = ACC + 4 * (aa * 2 + t); au = ACC + 4 * ((7 + aa) * 2 + t); ab = AB + 2 * t
            tt = T + 10 * ((aa * 2 + t) & 1)
            for h in range(2):
                A(f"v_pk_mul_f32 {v(tt+2*h,2)}, {v(CS+4*aa+2*h,2)}, {v(ab,2)} op_sel:[0,1] op_sel_hi:[1,1]")
                A(f"v_pk_fma_f32 {v(tt+2*h,2)}, {v(ag+2*h,2)}, {v(ab,2)}, {v(tt+2*h,2)} op_sel:[0,0,0] op_sel_hi:[1,0,1]")
                A(f"v_pk_mul_f32 {v(tt+4+2*h,2)}, {v(CS+28+4*aa+2*h,2)}, {v(ab,2)} op_sel:[0,1] op_sel_hi:[1,1]")
                A(f"v_pk_fma_f32 {v(tt+4+2*h,2)}, {v(au+2*h,2)}, {v(ab,2)}, {v(tt+4+2*h,2)} op_sel:[0,0,0] op_sel_hi:[1,0,1]")
                A(f"v_pk_mul_f32 {v(tt+2*h,2)}, {v(tt+2*h,2)}, {v(tt+4+2*h,2)}")
            A(f"v_cvt_pk_bf16_f32 {v(tt+8)}, {v(tt)}, {v(tt+1)}")
            A(f"v_cvt_pk_bf16_f32 {v(tt+9)}, {v(tt+2)}, {v(tt+3)}")
            so = "0" if t == 0 else "s77"
            A(f"buffer_store_dwordx2 {v(tt+8,2)}, {v(VO)}, s[{SR_OUT}:{SR_OUT+3}], {so} offen offset:{32*aa}")
    A("s_endpgm")
    for i in range(4):
        A.label(labs[i]); emit_loader(A, g, i, [SR_W0, SR_W1]); A("s_endpgm")
    A.label(end); A("s_endpgm")
    return g.lds

def gen_res(A, name):
    down = name == "down"
    K = 1728 if down else 640
    sched = {0: [("W", 5), ("X", 1, 0)], 1: [("W", 6)], 2: [("W", 7)], 3: [("W", 8), ("W", 9)],
             5: [("W", 0), ("X", 0, 0)], 6: [("W", 1)], 7: [("W", 2)], 8: [("W", 3)], 9: [("W", 4)]}
    g = Gemm(name, BM=64, xstride=(3456 if down else 1280), K=K, warrs=[dict(stride=1280, cols=80, xor=False)],
             R=8, WM=4, WN=1, TM=1, TN=5, ring=10, b=5, sched=sched)
    g.nwa = 1
    A.prefix = name + "_"
    end = name + "_end"
    common_prologue(A, 256, end)
    A(f"s_and_b32 s{S_T0}, s{S_IDX}, 3\ns_lshl_b32 s{S_T1}, s{S_XCD}, 2\ns_add_u32 s{S_T0}, s{S_T0}, s{S_T1}")
    A(f"s_lshl_b32 s{S_M0}, s{S_T0}, 6")
    A(f"s_lshr_b32 s{S_T2}, s{S_IDX}, 2\ns_mul_i32 s{S_N0}, s{S_T2}, 80")
    if down:
        srd(A, SR_X, P_WS, S_ * F_ * 2, WS_H); srd(A, SR_W0, P_WD, 1728 * 1280)
    else:
        srd(A, SR_X, P_WS, SEC, WS_O); srd(A, SR_W0, P_WO, 640 * 1280)
    labs = role_split(A, g, None, name)
    ACC, WR, XB, VXA, VWA, RES, VO = 16, 40, 80, 88, 90, 92, 104
    if down:
        srd(A, SR_AUX, P_WS, SEC, WS_X1)
        srd_sel(A, SR_OUT, P_WS, WS_X2, P_OUT, 0, SEC)
        srd(A, SR_AUX2, P_WS, ST_SZ, WS_ST2)
    else:
        srd_sel(A, SR_AUX, P_X, 0, P_WS, WS_X2, SEC)
        srd(A, SR_OUT, P_WS, SEC, WS_X1)
        srd(A, SR_AUX2, P_WS, ST_SZ, WS_ST1)
    A(f"s_lshl_b32 s68, s{S_WAVE}, 4\ns_add_u32 s68, s68, s{S_M0}")
    A("v_and_b32 v4, 15, v0\nv_add_u32 v4, s68, v4")
    A("v_lshlrev_b32 v7, 6, v4")
    A("v_mul_u32_u24 v4, 1280, v4")
    A("v_lshrrev_b32 v5, 4, v0\nv_lshlrev_b32 v5, 3, v5")
    A(f"s_lshl_b32 s75, s{S_N0}, 1")
    A(f"v_add3_u32 {v(VO)}, v4, v5, s75")
    A(f"s_lshl_b32 s75, s{S_T2}, 3")
    A(f"v_add_u32 {v(VO+1)}, s75, v7")
    for f in range(5):
        A(f"buffer_load_dwordx2 {v(RES+2*f,2)}, {v(VO)}, s[{SR_AUX}:{SR_AUX+3}], 0 offen offset:{32*f}")
    A(f"s_mov_b32 s76, s{S_WAVE}")
    emit_xaddr(A, g, VXA, 76)
    emit_waddr_base(A, g.warrs[0], VWA)
    for i in range(20): A(f"v_mov_b32 {v(ACC+i)}, 0")
    A(f"s_mov_b32 s{S_CUR}, 0\ns_mov_b32 s{S_DP}, {g.slot}\ns_mov_b32 s{S_DM}, {-(g.R-1)*g.slot & 0xffffffff}")
    emit_compute_main(A, g, ACC, WR, XB, VXA, VWA, lambda f: (0, f, 0))
    A("s_waitcnt vmcnt(0)")
    T = 110
    PK = 132
    for f in range(5):
        acc = ACC + 4 * f
        for h in range(2):
            r = RES + 2 * f + h
            A(f"v_lshlrev_b32 {v(T+4*f+2*h)}, 16, {v(r)}")
            A(f"v_and_b32 {v(T+4*f+2*h+1)}, 0xffff0000, {v(r)}")
            A(f"v_pk_add_f32 {v(T+4*f+2*h,2)}, {v(T+4*f+2*h,2)}, {v(acc+2*h,2)}")
            A(f"v_cvt_pk_bf16_f32 {v(PK+2*f+h)}, {v(T+4*f+2*h)}, {v(T+4*f+2*h+1)}")
        A(f"buffer_store_dwordx2 {v(PK+2*f,2)}, {v(VO)}, s[{SR_OUT}:{SR_OUT+3}], 0 offen offset:{32*f}")
    for q in range(10):
        A(f"v_lshlrev_b32 {v(T+2*q)}, 16, {v(PK+q)}")
        A(f"v_and_b32 {v(T+2*q+1)}, 0xffff0000, {v(PK+q)}")
    U = 144
    def xreduce(r):
        A(f"v_mov_b32 {v(U+4)}, {v(r)}")
        A(f"v_permlane16_swap_b32 {v(U+4)}, {v(r)}")
        A(f"v_add_f32 {v(r)}, {v(r)}, {v(U+4)}")
        A(f"v_mov_b32 {v(U+4)}, {v(r)}")
        A(f"v_permlane32_swap_b32 {v(U+4)}, {v(r)}")
        A(f"v_add_f32 {v(r)}, {v(r)}, {v(U+4)}")
    A(f"v_add_f32 {v(U)}, {v(T)}, {v(T+1)}")
    for q in range(2, 20): A(f"v_add_f32 {v(U)}, {v(U)}, {v(T+q)}")
    xreduce(U)
    A(f"v_mul_f32 {v(U+2)}, {f32bits(-1.0/80)}, {v(U)}")
    for q in range(20): A(f"v_add_f32 {v(T+q)}, {v(T+q)}, {v(U+2)}")
    A(f"v_mul_f32 {v(U+1)}, {v(T)}, {v(T)}")
    for q in range(1, 20): A(f"v_fmac_f32 {v(U+1)}, {v(T+q)}, {v(T+q)}")
    xreduce(U + 1)
    A("v_cmp_gt_u32 vcc, 16, v0")
    A("s_and_saveexec_b64 s[78:79], vcc")
    A(f"buffer_store_dwordx2 {v(U,2)}, {v(VO+1)}, s[{SR_AUX2}:{SR_AUX2+3}], 0 offen")
    A("s_endpgm")
    for i in range(4):
        A.label(labs[i]); emit_loader(A, g, i, [SR_W0]); A("s_endpgm")
    A.label(end); A("s_endpgm")
    return g.lds

def gen_attn(A):
    A.prefix = "attn_"
    end = "attn_end"
    KOFF, VOFF = 0, 512 * 48 + 64
    lds = VOFF + 512 * 48 + 64
    common_prologue(A, 256, end)
    SRQ, SRO = 24, 28
    srd(A, SRQ, P_WS, 3 * SEC, WS_QKV)
    srd(A, SRO, P_WS, SEC, WS_O)
    Sb, KB, VB, O, Q, M = 32, 176, 192, 208, 224, 232
    A(f"s_mul_i32 s30, s{S_IDX}, 81920") if False else None
    A(f"s_mul_i32 s52, s{S_IDX}, 81920")
    A(f"s_lshl_b32 s53, s{S_XCD}, 8")
    A(f"s_lshl_b32 s54, s{S_WAVE}, 6")
    A("v_add_u32 v1, s54, v0")
    A(f"s_sub_i32 s55, s53, 256")
    A("v_add_u32 v2, s55, v1")
    A("v_max_i32 v2, 0, v2")
    A("v_mul_u32_u24 v2, 40, v2")
    A("v_add_u32 v2, s52, v2")
    A(f"s_mov_b32 s56, {SEC}\ns_mov_b32 s57, {2*SEC}")
    A(f"buffer_load_dwordx4 v[4:7], v2, s[{SRQ}:{SRQ+3}], s56 offen")
    A(f"buffer_load_dwordx4 v[8:11], v2, s[{SRQ}:{SRQ+3}], s56 offen offset:16")
    A(f"buffer_load_dwordx2 v[12:13], v2, s[{SRQ}:{SRQ+3}], s56 offen offset:32")
    A(f"buffer_load_dwordx4 v[16:19], v2, s[{SRQ}:{SRQ+3}], s57 offen")
    A(f"buffer_load_dwordx4 v[20:23], v2, s[{SRQ}:{SRQ+3}], s57 offen offset:16")
    A(f"buffer_load_dwordx2 v[24:25], v2, s[{SRQ}:{SRQ+3}], s57 offen offset:32")
    A("v_and_b32 v28, 31, v0\nv_lshrrev_b32 v29, 5, v0")
    A(f"s_lshl_b32 s58, s{S_WAVE}, 5\ns_add_u32 s58, s58, s53")
    A("v_add_u32 v30, s58, v28")
    A("v_mul_u32_u24 v3, 40, v30\nv_add_u32 v3, s52, v3")
    A("v_lshl_add_u32 v31, v29, 4, v3")
    A(f"buffer_load_dwordx4 {v(Q,4)}, v31, s[{SRQ}:{SRQ+3}], 0 offen")
    A(f"buffer_load_dwordx2 {v(Q+4,2)}, v3, s[{SRQ}:{SRQ+3}], 0 offen offset:32")
    A("v_mov_b32 v14, 0\nv_mov_b32 v15, 0\nv_mov_b32 v26, 0x3f80\nv_mov_b32 v27, 0")
    A(f"v_mov_b32 {v(Q+6)}, 0\nv_mov_b32 {v(Q+7)}, 0")
    A("v_lshlrev_b32 v1, 2, v29\nv_sub_u32 v1, v28, v1")
    MS = 64
    for r in range(16):
        c = (r & 3) + 8 * (r >> 2)
        A(f"v_cmp_le_i32 s[{MS+2*r}:{MS+2*r+1}], {c}, v1")
    A("v_add_u32 v2, s54, v0\nv_mul_u32_u24 v2, 48, v2")
    A("s_waitcnt vmcnt(2)")
    A(f"ds_write_b128 v2, v[4:7] offset:{KOFF}")
    A(f"ds_write_b128 v2, v[8:11] offset:{KOFF+16}")
    A(f"ds_write_b128 v2, v[12:15] offset:{KOFF+32}")
    A(f"ds_write_b128 v2, v[16:19] offset:{VOFF}")
    A(f"ds_write_b128 v2, v[20:23] offset:{VOFF+16}")
    A(f"ds_write_b128 v2, v[24:27] offset:{VOFF+32}")
    VK, VV = 2, 3
    A(f"s_lshl_b32 s59, s{S_WAVE}, 5")
    A("v_add_u32 v4, s59, v28\nv_mul_u32_u24 v4, 48, v4")
    A(f"v_lshl_add_u32 v{VK}, v29, 4, v4")
    A("v_and_b32 v4, 15, v0\nv_lshrrev_b32 v5, 2, v4")
    A("v_lshl_add_u32 v5, v29, 2, v5\nv_add_u32 v5, s59, v5\nv_mul_u32_u24 v5, 48, v5")
    A("v_and_b32 v4, 3, v4\nv_lshl_add_u32 v5, v4, 3, v5")
    A("v_lshrrev_b32 v4, 4, v0\nv_and_b32 v4, 1, v4")
    A(f"v_lshl_add_u32 v{VV}, v4, 5, v5")
    A("s_waitcnt vmcnt(0)")
    A("v_cmp_eq_u32 vcc, 0, v29")
    A(f"v_cndmask_b32 {v(Q+4)}, 0, {v(Q+4)}, vcc")
    A(f"v_cndmask_b32 {v(Q+5)}, 0, {v(Q+5)}, vcc")
    A("s_waitcnt lgkmcnt(0)")
    A("s_barrier")
    def kread(t):
        b = KB + 8 * (t & 1)
        A(f"ds_read_b128 {v(b,4)}, v{VK} offset:{KOFF + t*1536}")
        A(f"ds_read_b128 {v(b+4,4)}, v{VK} offset:{KOFF + t*1536 + 32}")
    kread(0)
    for t in range(9):
        if t + 1 < 9: kread(t + 1)
        A(f"s_waitcnt lgkmcnt({2 if t + 1 < 9 else 0})")
        b = KB + 8 * (t & 1); s0 = Sb + 16 * t
        A(f"v_mfma_f32_32x32x16_bf16 {v(s0,16)}, {v(b,4)}, {v(Q,4)}, 0")
        A(f"v_mfma_f32_32x32x16_bf16 {v(s0,16)}, {v(b+4,4)}, {v(Q+4,4)}, {v(s0,16)}")
    def vread(t):
        b = VB + 8 * (t & 1)
        for st in range(2):
            for rd in range(2):
                A(f"ds_read_b64_tr_b16 {v(b+4*st+2*rd,2)}, v{VV} offset:{VOFF + t*1536 + st*768 + rd*384}")
    skip = A.newlabel("valid")
    A(f"s_cmp_lg_u32 s{S_XCD}, 0\ns_cbranch_scc1 {skip}")
    A(f"s_sub_u32 s60, 8, s{S_WAVE}")
    for t in range(8):
        l2 = A.newlabel("v")
        A(f"s_cmp_le_u32 s60, {t}\ns_cbranch_scc1 {skip}")
        for r in range(16): A(f"v_mov_b32 {v(Sb+16*t+r)}, 0xff800000")
    A.label(skip)
    A("s_nop 7\ns_nop 3")
    for r in range(16):
        A(f"v_cndmask_b32 {v(Sb+r)}, {v(Sb+r)}, {v(Sb+128+r)}, s[{MS+2*r}:{MS+2*r+1}]")
    A(f"v_max3_f32 {v(M)}, {v(Sb)}, {v(Sb+1)}, {v(Sb+2)}")
    A(f"v_max3_f32 {v(M+1)}, {v(Sb+3)}, {v(Sb+4)}, {v(Sb+5)}")
    i = 6; alt = 0
    while i + 1 < 128:
        A(f"v_max3_f32 {v(M+alt)}, {v(M+alt)}, {v(Sb+i)}, {v(Sb+i+1)}"); i += 2; alt ^= 1
    A(f"v_max_f32 {v(M)}, {v(M)}, {v(M+1)}")
    A(f"v_mov_b32 {v(M+1)}, {v(M)}")
    A(f"v_permlane32_swap_b32 {v(M+1)}, {v(M)}")
    A(f"v_max_f32 {v(M)}, {v(M)}, {v(M+1)}")
    vread(0)
    def expo(t):
        s0 = Sb + 16 * t
        for r in range(16): A(f"v_sub_f32 {v(s0+r)}, {v(s0+r)}, {v(M)}")
        for r in range(16): A(f"v_exp_f32 {v(s0+r)}, {v(s0+r)}")
    def pack(t):
        s0 = Sb + 16 * t
        for q in range(8): A(f"v_cvt_pk_bf16_f32 {v(s0+q)}, {v(s0+2*q)}, {v(s0+2*q+1)}")
    def pv(t, first):
        b = VB + 8 * (t & 1); s0 = Sb + 16 * t
        A(f"v_mfma_f32_32x32x16_bf16 {v(O,16)}, {v(b,4)}, {v(s0,4)}, {'0' if first else v(O,16)}")
        A(f"v_mfma_f32_32x32x16_bf16 {v(O,16)}, {v(b+4,4)}, {v(s0+4,4)}, {v(O,16)}")
    expo(0)
    for r in range(16):
        A(f"v_cndmask_b32 {v(Sb+128+r)}, 0, {v(Sb+r)}, s[{MS+2*r}:{MS+2*r+1}]")
        A(f"v_cndmask_b32 {v(Sb+r)}, {v(Sb+r)}, 0, s[{MS+2*r}:{MS+2*r+1}]")
    pack(0); pack(8)
    vread(1)
    A("s_waitcnt lgkmcnt(4)")
    pv(0, True)
    for t in range(1, 8):
        expo(t); pack(t)
        vread(t + 1)
        A("s_waitcnt lgkmcnt(4)")
        pv(t, False)
    A("s_waitcnt lgkmcnt(0)")
    pv(8, False)
    A(f"v_mov_b32 {v(M)}, {v(O+8)}")
    A(f"v_mov_b32 {v(M+1)}, {v(O+8)}")
    A(f"v_permlane32_swap_b32 {v(M)}, {v(M+1)}")
    A(f"v_rcp_f32 {v(M+1)}, {v(M+1)}")
    for r in range(12): A(f"v_mul_f32 {v(O+r)}, {v(O+r)}, {v(M+1)}")
    for q in range(6): A(f"v_cvt_pk_bf16_f32 {v(M+2+q)}, {v(O+2*q)}, {v(O+2*q+1)}")
    A("v_mul_u32_u24 v4, 1280, v30")
    A(f"s_mul_i32 s61, s{S_IDX}, 40")
    A("v_add_u32 v4, s61, v4")
    A("v_lshl_add_u32 v5, v29, 3, v4")
    A(f"buffer_store_dwordx2 {v(M+2,2)}, v5, s[{SRO}:{SRO+3}], 0 offen")
    A(f"buffer_store_dwordx2 {v(M+4,2)}, v5, s[{SRO}:{SRO+3}], 0 offen offset:16")
    A("v_cmp_gt_u32 vcc, 32, v0\ns_and_saveexec_b64 s[62:63], vcc")
    A(f"buffer_store_dwordx2 {v(M+6,2)}, v4, s[{SRO}:{SRO+3}], 0 offen offset:32")
    A("s_endpgm")
    A.label(end); A("s_endpgm")
    return lds

def gen_prep(A):
    A.prefix = "prep_"
    end = "prep_end"
    NA, NB = 32, 84
    common_prologue(A, NA + NB, end)
    lb = A.newlabel("colsum")
    A(f"s_cmp_ge_u32 s2, {NA}\ns_cbranch_scc1 {lb}")
    srd(A, 24, P_X, SEC)
    srd(A, 28, P_WS, ST_SZ, WS_ST0)
    A(f"s_lshl_b32 s30, s{S_WAVE}, 6") if False else None
    A(f"s_lshl_b32 s52, s{S_WAVE}, 6\ns_lshl_b32 s53, s2, 9\ns_add_u32 s52, s52, s53")
    A("v_add_u32 v1, s52, v0")
    A("v_lshrrev_b32 v2, 3, v1\nv_and_b32 v3, 7, v1")
    A("v_mul_u32_u24 v2, 1280, v2\nv_mul_u32_u24 v3, 160, v3\nv_add_u32 v2, v2, v3")
    R0 = 8
    for i in range(10):
        A(f"buffer_load_dwordx4 {v(R0+4*i,4)}, v2, s[24:27], 0 offen offset:{16*i}")
    A("s_waitcnt vmcnt(0)")
    T = 48
    for q in range(40):
        A(f"v_lshlrev_b32 {v(T+2*q)}, 16, {v(R0+q)}")
        A(f"v_and_b32 {v(T+2*q+1)}, 0xffff0000, {v(R0+q)}")
    A(f"v_add_f32 v4, {v(T)}, {v(T+1)}")
    for q in range(2, 80): A(f"v_add_f32 v4, v4, {v(T+q)}")
    A(f"v_mul_f32 v6, {f32bits(-1.0/80)}, v4")
    for q in range(80): A(f"v_add_f32 {v(T+q)}, {v(T+q)}, v6")
    A(f"v_mul_f32 v5, {v(T)}, {v(T)}")
    for q in range(1, 80): A(f"v_fmac_f32 v5, {v(T+q)}, {v(T+q)}")
    A("v_lshlrev_b32 v1, 3, v1")
    A("buffer_store_dwordx2 v[4:5], v1, s[28:31], 0 offen")
    A("s_endpgm")
    A.label(lb)
    A(f"s_sub_u32 s52, s2, {NA}")
    l1 = A.newlabel("wg"); l2 = A.newlabel("wu"); l3 = A.newlabel("go")
    A(f"s_cmp_ge_u32 s52, 57\ns_cbranch_scc1 {l2}")
    A(f"s_cmp_ge_u32 s52, 30\ns_cbranch_scc1 {l1}")
    srd(A, 24, P_WQKV, 640 * 3840); A(f"s_mov_b32 s53, 3840\ns_mov_b32 s54, s52\ns_branch {l3}")
    A.label(l1)
    srd(A, 24, P_WG, 640 * 3456); A(f"s_mov_b32 s53, 3456\ns_sub_u32 s54, s52, 30\ns_branch {l3}")
    A.label(l2)
    srd(A, 24, P_WU, 640 * 3456); A(f"s_mov_b32 s53, 3456\ns_sub_u32 s54, s52, 57")
    A.label(l3)
    srd(A, 28, P_WS, CS_SZ, WS_CS)
    A(f"s_lshl_b32 s55, s{S_WAVE}, 6\nv_add_u32 v1, s55, v0")
    A("v_and_b32 v2, 7, v1\nv_lshrrev_b32 v3, 3, v1")
    A("v_mul_u32_u24 v4, 10, v3\nv_mul_lo_u32 v4, v4, s53")
    A("v_lshl_add_u32 v4, v2, 4, v4")
    A("s_lshl_b32 s56, s54, 7\nv_add_u32 v4, s56, v4")
    R0 = 8
    A("s_mov_b32 s57, 0")
    for i in range(10):
        A(f"buffer_load_dwordx4 {v(R0+4*i,4)}, v4, s[24:27], s57 offen")
        A("s_add_u32 s57, s57, s53")
    T = 48
    for e in range(8): A(f"v_mov_b32 {v(T+e)}, 0")
    A("s_waitcnt vmcnt(0)")
    for i in range(10):
        for q in range(4):
            A(f"v_lshlrev_b32 v5, 16, {v(R0+4*i+q)}")
            A(f"v_and_b32 v6, 0xffff0000, {v(R0+4*i+q)}")
            A(f"v_add_f32 {v(T+2*q)}, {v(T+2*q)}, v5")
            A(f"v_add_f32 {v(T+2*q+1)}, {v(T+2*q+1)}, v6")
    A("v_lshlrev_b32 v5, 8, v3\nv_lshl_add_u32 v5, v2, 5, v5")
    A(f"ds_write_b128 v5, {v(T,4)}\nds_write_b128 v5, {v(T+4,4)} offset:16")
    A("s_waitcnt lgkmcnt(0)\ns_barrier")
    A(f"s_lshl_b32 s58, s{S_WAVE}, 11")
    A("v_lshlrev_b32 v5, 2, v0\nv_add_u32 v5, s58, v5")
    for i in range(8): A(f"ds_read_b32 {v(R0+i)}, v5 offset:{256*i}")
    A("s_waitcnt lgkmcnt(0)")
    for i in range(1, 8): A(f"v_add_f32 {v(R0)}, {v(R0)}, {v(R0+i)}")
    A("s_barrier")
    A(f"s_lshl_b32 s58, s{S_WAVE}, 8")
    A("v_lshlrev_b32 v5, 2, v0\nv_add_u32 v6, s58, v5")
    A(f"ds_write_b32 v6, {v(R0)}")
    A("s_waitcnt lgkmcnt(0)\ns_barrier")
    A(f"s_cmp_lg_u32 s{S_WAVE}, 0\ns_cbranch_scc1 {end}")
    for i in range(8): A(f"ds_read_b32 {v(R0+i)}, v5 offset:{256*i}")
    A("s_waitcnt lgkmcnt(0)")
    for i in range(1, 8): A(f"v_add_f32 {v(R0)}, {v(R0)}, {v(R0+i)}")
    A("s_lshl_b32 s59, s52, 8\nv_add_u32 v5, s59, v5")
    A(f"buffer_store_dword {v(R0)}, v5, s[28:31], 0 offen")
    A("s_endpgm")
    A.label(end); A("s_endpgm")
    return 16384, NA + NB

def build(extra_empty=0, upto=None):
    parts = []; descs = []; launches = []
    def body(name, fn):
        A = Asm()
        A.label(name + "_body")
        r = fn(A)
        return A, r
    out = []
    kern = {}
    specs = [("prep", gen_prep), ("qkv", gen_qkv), ("attn", gen_attn), ("wo", lambda A: gen_res(A, "wo")), ("gu", gen_gu), ("down", lambda A: gen_res(A, "down"))]
    for name, fn in specs:
        A, r = body(name, fn)
        lds, nwg = (r if isinstance(r, tuple) else (r, 256))
        kern[name] = (lds, nwg)
        layered = name in ("qkv", "wo", "down")
        txt = ""
        if layered:
            for l in range(2):
                kn = f"{name}{l}_kernel"
                txt += kernel_header(kn) + f"    s_mov_b32 s{S_LAYER}, {l}\n    s_branch {name}_body\n"
                descs.append(kernel_desc(kn))
            txt += ".p2align 8\n"
        else:
            kn = f"{name}_kernel"
            txt += kernel_header(kn) + f"    s_mov_b32 s{S_LAYER}, 0\n"
            descs.append(kernel_desc(kn))
        txt += A.text()
        parts.append(txt)
        print(f"; {name}: lds={lds} nwg={nwg} nops={A.nnop} items={len(A.items)}", file=sys.stderr)
    seq = ["prep", "qkv0", "attn", "wo0", "gu", "down0", "qkv1", "attn", "wo1", "gu", "down1"]
    if upto is not None: seq = seq[:upto]
    for k in seq:
        base = k.rstrip("01")
        lds, nwg = kern[base]
        launches.append(f"; @launch kernel={k}_kernel grid=({nwg},1,1) block=(512,1,1) lds={lds}")
    if extra_empty:
        parts.append(kernel_header("empty_kernel") + "    s_endpgm\n"); descs.append(kernel_desc("empty_kernel"))
        for _ in range(extra_empty): launches.append("; @launch kernel=empty_kernel grid=(256,1,1) block=(512,1,1) lds=0")
    ref = open("interleave_layers__sliding_block__glu_gated_bilinear__prompt.s.ref").read().split("\n")
    hdr = [l for l in ref[:13] if l.startswith(";") and "@launch" not in l and "Override" not in l and "grid=ceil" not in l]
    return "\n".join(hdr) + "\n" + "\n".join(launches) + "\n" + TARGET + "".join(parts) + "".join(descs)

if __name__ == "__main__":
    import argparse
    ap = argparse.ArgumentParser()
    ap.add_argument("-o", default="interleave_layers__sliding_block__glu_gated_bilinear__prompt.s")
    ap.add_argument("--empty", type=int, default=0)
    ap.add_argument("--upto", type=int, default=None)
    a_ = ap.parse_args()
    open(a_.o, "w").write(build(a_.empty, a_.upto))
```
